```python
import torch

def _softmax(x, axis=-1):
    return torch.softmax(x, dim=axis)
def _gelu(x):
    return torch.nn.functional.gelu(x, approximate="tanh")
def _silu(x):
    return torch.nn.functional.silu(x)
def _sigmoid(x):
    return torch.sigmoid(x)
def _layernorm(x, axis=-1, eps=1e-5):
    m = x.mean(dim=axis, keepdim=True)
    v = x.var(dim=axis, keepdim=True, unbiased=False)
    return (x - m) / torch.sqrt(v + eps)
def _scatter_add(tgt, idx, src, axis=0):
    return tgt.clone().index_add_(axis, idx, src)
def _segment_sum(src, seg, n):
    out = torch.zeros((n,) + src.shape[1:], dtype=src.dtype)
    return out.index_add_(0, seg, src)
def _pad(x, pw):
    flat = tuple(v for pair in reversed(pw) for v in pair)
    return torch.nn.functional.pad(x, flat)

kernel_name = 'concat_heads__gqa_block_cached__gqa_block_cached__near_ridge'

def setup_inputs():

    _w = (lambda a: (lambda t: t.to(torch.bfloat16) if t.is_floating_point() else t)(torch.as_tensor(a)))
    def _A_setup():
        B, Sq, D = 8, 256, 640
        Hq, Hkv, Sk, Dh = 32, 32, 1024, 192
        assert Hq % Hkv == 0, (Hq, Hkv)
        return {
            "x": _w((lambda *s: torch.randn(*s, dtype=torch.bfloat16) * 0.8)(B, Sq, D)),
            "k_cache": _w((lambda *s: torch.randn(*s, dtype=torch.bfloat16) * 0.8)(B, Hkv, Sk, Dh)),
            "v_cache": _w((lambda *s: torch.randn(*s, dtype=torch.bfloat16) * 0.05)(B, Hkv, Sk, Dh)),
            "wq": _w((lambda *s: torch.randn(*s, dtype=torch.bfloat16) * 0.8)(D, Hq * Dh) * (D ** -0.5)),
            "wo": _w((lambda *s: torch.randn(*s, dtype=torch.bfloat16) * 0.05)(Hq * Dh, D) * ((Hq * Dh) ** -0.5)),
        }
    _A_in = _A_setup()

    def _B_setup():
        B, Sq, D = 8, 256, 640
        Hq, Hkv, Sk, Dh = 32, 32, 1024, 192
        assert Hq % Hkv == 0, (Hq, Hkv)
        return {
            "x": _w((lambda *s: torch.randn(*s, dtype=torch.bfloat16) * 0.8)(B, Sq, D)),
            "k_cache": _w((lambda *s: torch.randn(*s, dtype=torch.bfloat16) * 0.8)(B, Hkv, Sk, Dh)),
            "v_cache": _w((lambda *s: torch.randn(*s, dtype=torch.bfloat16) * 0.05)(B, Hkv, Sk, Dh)),
            "wq": _w((lambda *s: torch.randn(*s, dtype=torch.bfloat16) * 0.8)(D, Hq * Dh) * (D ** -0.5)),
            "wo": _w((lambda *s: torch.randn(*s, dtype=torch.bfloat16) * 0.05)(Hq * Dh, D) * ((Hq * Dh) ** -0.5)),
        }
    _B_in = _B_setup()

    return {
        "A_x": _A_in["x"],
        "A_k_cache": _A_in["k_cache"],
        "A_v_cache": _A_in["v_cache"],
        "A_wq": _A_in["wq"],
        "A_wo": _A_in["wo"],
        "B_x": _B_in["x"],
        "B_k_cache": _B_in["k_cache"],
        "B_v_cache": _B_in["v_cache"],
        "B_wq": _B_in["wq"],
        "B_wo": _B_in["wo"],
    }

def reference(A_x, A_k_cache, A_v_cache, A_wq, A_wo, B_x, B_k_cache, B_v_cache, B_wq, B_wo):
    def _A_ref(x, k_cache, v_cache, wq, wo):
        B, Sq, D = x.shape
        Hq, Dh = 32, 192
        Hkv = k_cache.shape[1]
        rep = Hq // Hkv
        q = (lambda x, *d: x.permute(*d))((x @ wq).reshape(B, Sq, Hq, Dh), 0, 2, 1, 3)
        k = (lambda x, n, axis: torch.repeat_interleave(x, n, dim=axis))(k_cache, rep, axis=1)
        v = (lambda x, n, axis: torch.repeat_interleave(x, n, dim=axis))(v_cache, rep, axis=1)
        scores = torch.einsum("bhqd,bhkd->bhqk", q, k) * (Dh ** -0.5)
        p = _softmax(scores, axis=-1)
        o = torch.einsum("bhqk,bhkd->bhqd", p, v)
        return (lambda x, *d: x.permute(*d))(o, 0, 2, 1, 3).reshape(B, Sq, Hq * Dh) @ wo

    def _B_ref(x, k_cache, v_cache, wq, wo):
        B, Sq, D = x.shape
        Hq, Dh = 32, 192
        Hkv = k_cache.shape[1]
        rep = Hq // Hkv
        q = (lambda x, *d: x.permute(*d))((x @ wq).reshape(B, Sq, Hq, Dh), 0, 2, 1, 3)
        k = (lambda x, n, axis: torch.repeat_interleave(x, n, dim=axis))(k_cache, rep, axis=1)
        v = (lambda x, n, axis: torch.repeat_interleave(x, n, dim=axis))(v_cache, rep, axis=1)
        scores = torch.einsum("bhqd,bhkd->bhqk", q, k) * (Dh ** -0.5)
        p = _softmax(scores, axis=-1)
        o = torch.einsum("bhqk,bhkd->bhqd", p, v)
        return (lambda x, *d: x.permute(*d))(o, 0, 2, 1, 3).reshape(B, Sq, Hq * Dh) @ wo

    a = _A_ref(A_x, A_k_cache, A_v_cache, A_wq, A_wo)
    b = _B_ref(B_x, B_k_cache, B_v_cache, B_wq, B_wo)
    return torch.concatenate([a, b], axis=-1)
```

```python
import math, sys, struct

def f32hex(x):
    return "0x%08x" % struct.unpack("<I", struct.pack("<f", x))[0]

class Cfg:
    D = 6
    NP = 8
    G = 2
    BAR_POS = 8
    THR = 8.0

CFG = Cfg()

class Stream:
    def __init__(self, pool_base, np_, d, g):
        self.slots = []
        self.pool_base = pool_base
        self.NP = np_; self.D = d; self.G = g
        self.out = []
        self.base = {}
        self.groups = {}
        self.vm = []
        self.marks = {}
    def e(self, s): self.out.append("    " + s)
    def label(self, s): self.out.append(s + ":")
    def vmem(self, text, tag):
        self.e(text); self.vm.append(tag)
    def vm_wait(self, tags):
        last = -1
        for i, t in enumerate(self.vm):
            if t in tags: last = i
        if last < 0: return
        n = len(self.vm) - 1 - last
        assert n <= 63
        self.e("s_waitcnt vmcnt(%d)" % n)
        self.vm = self.vm[last + 1:]
    def add(self, reads, mfma, pre=None, post=None, need=None):
        self.slots.append(dict(reads=reads, mfma=mfma, pre=list(pre or []), post=list(post or []), need=need))
        return len(self.slots) - 1
    def _emit_item(self, it):
        if callable(it): it(self)
        elif it.endswith(":"): self.out.append(it)
        else: self.e(it)
    def _issue_reads(self, n):
        sl = self.slots[n]
        if sl["need"] is not None:
            assert sl["need"] in self.ready, ("read before barrier", n, sl["need"])
        dst = self.pool_base + 4 * (n % self.NP)
        for i, (kind, grp, idx, off) in enumerate(sl["reads"]):
            nb = sl["slotbase"] // self.gran * self.gran
            rel = off - self.base[grp]
            if nb != self.base[grp]:
                delta = nb - self.base[grp]
                for r in self.groups[grp]:
                    self.e("v_add_u32 v%d, 0x%x, v%d" % (r, delta & 0xffffffff, r))
                self.base[grp] = nb
                rel = off - nb
            assert 0 <= rel <= 65535
            a = self.groups[grp][idx]
            if kind == "b128":
                self.e("ds_read_b128 v[%d:%d], v%d offset:%d" % (dst, dst + 3, a, rel))
            else:
                self.e("ds_read_b64_tr_b16 v[%d:%d], v%d offset:%d" % (dst + 2 * i, dst + 2 * i + 1, a, rel))
            self.lq.append(n)
    def run(self):
        self.lq = []
        self.ready = getattr(self, "ready", set())
        N = len(self.slots)
        issued = 0
        waited = -1
        for n in range(N):
            sl = self.slots[n]
            for it in sl["pre"]: self._emit_item(it)
            while issued < min(N, n + self.D) and issued <= n + self.D - 1 and \
                    (self.slots[issued]["need"] is None or self.slots[issued]["need"] in self.ready):
                self._issue_reads(issued); issued += 1
            assert issued > n
            if waited < n:
                tgt = min(n + self.G - 1, issued - 1)
                last = max(i for i, f in enumerate(self.lq) if f <= tgt)
                cnt = len(self.lq) - 1 - last
                assert cnt <= 15
                self.e("s_waitcnt lgkmcnt(%d)" % cnt)
                self.lq = self.lq[last + 1:]
                waited = tgt
            dst = self.pool_base + 4 * (n % self.NP)
            self.e(sl["mfma"].replace("{A}", "v[%d:%d]" % (dst, dst + 3)))
            if issued < N and issued == n + self.D:
                self._issue_reads(issued); issued += 1
                assert len(self.lq) <= 15
            for it in sl["post"]: self._emit_item(it)

def spread(ops, gaps):
    res = {}
    n = len(ops); k = len(gaps)
    for i, op in enumerate(ops):
        g = gaps[i * k // n]
        res.setdefault(g, []).append(op)
    return res

O_ = 0; Q_ = 96; S_ = [144, 160]; NM = 176; POOL = 192
KA = [224, 225, 226, 227]; VA = [228, 229]
VS = [230, 231, 232]; VW = [233, 234, 235]; VALT = [236, 237, 238]
VX = 239; VO = 240; VL = 241; VT = 242; T0 = 243; T1 = 244; T2 = 245; T3 = 246; T4 = 247; T5 = 248
XR = 96
SLOT = 24576; HALF = 12288; NSLOT = 6
sB = 30; sH = 31; sWv = 32; sG = 33; sWL = 34; sSRC = 35; sWSRC = 36; sALTO = 37; sLOOP = 38; sT = 39
sS = 40; sALT = 44; sW = 48; sX = 52; sO = 56; sC = 60; sT2 = 62; sMASK = 64

def srd(g, d, ptr, off_sgpr, size):
    g.e("s_add_u32 s%d, s%d, s%d" % (d, ptr, off_sgpr))
    g.e("s_addc_u32 s%d, s%d, 0" % (d + 1, ptr + 1))
    g.e("s_mov_b32 s%d, 0x%x" % (d + 2, size))
    g.e("s_mov_b32 s%d, 0x00020000" % (d + 3))

def mf(d, b, c):
    cs = "0" if c is None else "v[%d:%d]" % (c, c + 15)
    return "v_mfma_f32_32x32x16_bf16 v[%d:%d], {A}, v[%d:%d], %s" % (d, d + 15, b, b + 3, cs)

def vfrag(slot, half, t, dt):
    off = slot * SLOT + half * HALF + 16 * t * 384 + (dt >> 1) * 128
    return [("tr", "V", dt & 1, off), ("tr", "V", dt & 1, off + 4 * 384)]
def kfrag(slot, half, s):
    off = slot * SLOT + half * HALF + (s >> 2) * 128
    return [("b128", "K", s & 3, off)]

def softmax_ops(S):
    ops = []
    for i in range(8):
        a, b = S + 2 * i, S + 2 * i + 1
        dst = S + (i & 3) + 8 * (i >> 2)
        ops += ["v_exp_f32 v%d, v%d" % (a, a), "v_exp_f32 v%d, v%d" % (b, b),
                "v_add_f32 v%d, v%d, v%d" % (VL, VL, a), "v_add_f32 v%d, v%d, v%d" % (VL, VL, b),
                "v_cvt_pk_bf16_f32 v%d, v%d, v%d" % (dst, a, b)]
    return ops
def max_ops(S):
    ops = ["v_max3_f32 v%d, v%d, v%d, v%d" % (VT, S, S + 1, S + 2)]
    for i in range(3, 15, 2):
        ops.append("v_max3_f32 v%d, v%d, v%d, v%d" % (VT, VT, S + i, S + i + 1))
    ops.append("v_max_f32 v%d, v%d, v%d" % (VT, VT, S + 15))
    return ops

def gen_attn():
    g = Stream(POOL, CFG.NP, CFG.D, CFG.G)
    g.groups = {"K": KA, "V": VA}
    g.base = {"K": 0, "V": 0}; g.gran = 2 * SLOT
    g.ready = set()
    rare = []
    e = g.e
    g.label("attn_kernel")
    e("s_cmp_ge_u32 s2, 256")
    e("s_cbranch_scc1 attn_done")
    e("s_load_dwordx16 s[4:19], s[0:1], 0")
    e("s_load_dwordx8 s[20:27], s[0:1], 64")
    e("s_load_dwordx2 s[28:29], s[0:1], 96")
    e("s_and_b32 s39, s2, 7")
    e("s_lshr_b32 s62, s2, 3")
    e("s_and_b32 s30, s39, 1")
    e("s_lshl_b32 s30, s30, 2")
    e("s_and_b32 s63, s62, 3")
    e("s_add_u32 s30, s30, s63")
    e("s_lshr_b32 s31, s39, 1")
    e("s_lshl_b32 s31, s31, 3")
    e("s_lshr_b32 s63, s62, 2")
    e("s_add_u32 s31, s31, s63")
    e("v_lshrrev_b32 v%d, 6, v0" % T0)
    e("v_and_b32 v%d, 63, v0" % T1)
    e("s_nop 0")
    e("v_readfirstlane_b32 s32, v%d" % T0)
    e("s_nop 3")
    e("s_lshr_b32 s33, s32, 2")
    e("s_and_b32 s39, s32, 3")
    e("s_mul_i32 s34, s39, 3072")
    e("s_mul_i32 s62, s33, 12288")
    e("s_add_u32 s34, s34, s62")
    e("s_mul_i32 s37, s33, %d" % (31 * HALF))
    e("s_cmp_eq_u32 s33, 1")
    e("s_cselect_b64 s[64:65], -1, 0")
    c = math.log2(math.e) / math.sqrt(192.0)
    e("s_mov_b32 s60, %s" % f32hex(c))
    e("s_mov_b32 s61, %s" % f32hex(c))
    lane = T1
    e("v_and_b32 v%d, 0x13, v%d" % (T2, lane))
    e("v_and_b32 v%d, 4, v%d" % (T3, lane))
    e("v_lshlrev_b32 v%d, 1, v%d" % (T3, T3))
    e("v_or_b32 v%d, v%d, v%d" % (T2, T2, T3))
    e("v_and_b32 v%d, 8, v%d" % (T3, lane))
    e("v_lshrrev_b32 v%d, 1, v%d" % (T3, T3))
    e("v_or_b32 v%d, v%d, v%d" % (T2, T2, T3))
    e("v_bfe_u32 v%d, v%d, 1, 3" % (T3, T2))
    e("v_lshrrev_b32 v%d, 5, v%d" % (T4, lane))
    e("v_xor_b32 v%d, v%d, v%d" % (T3, T3, T4))
    e("v_mul_u32_u24 v%d, 384, v%d" % (T2, T2))
    for u in range(4):
        e("v_xor_b32 v%d, %d, v%d" % (T5, 2 * u, T3))
        e("v_lshl_add_u32 v%d, v%d, 4, v%d" % (KA[u], T5, T2))
    e("v_bfe_u32 v%d, v%d, 2, 2" % (T2, lane))
    e("v_lshl_add_u32 v%d, v%d, 3, v%d" % (T3, T4, T2))
    e("v_mul_u32_u24 v%d, 384, v%d" % (T3, T3))
    e("v_bfe_u32 v%d, v%d, 4, 1" % (T5, lane))
    e("v_lshl_add_u32 v%d, v%d, 5, v%d" % (T3, T5, T3))
    e("v_and_b32 v%d, 1, v%d" % (T5, lane))
    e("v_lshl_add_u32 v%d, v%d, 4, v%d" % (T3, T5, T3))
    e("v_bfe_u32 v%d, v%d, 1, 1" % (T5, lane))
    e("v_lshl_add_u32 v%d, v%d, 3, v%d" % (T3, T5, T3))
    e("v_lshrrev_b32 v%d, 1, v%d" % (T2, T2))
    e("v_lshl_add_u32 v%d, v%d, 6, v%d" % (VA[0], T2, T3))
    e("v_xor_b32 v%d, 1, v%d" % (T2, T2))
    e("v_lshl_add_u32 v%d, v%d, 6, v%d" % (VA[1], T2, T3))
    e("s_mul_i32 s62, s39, 192")
    for i3 in range(3):
        e("v_add_u32 v%d, s62, v%d" % (T2, lane))
        if i3: e("v_add_u32 v%d, %d, v%d" % (T2, 64 * i3, T2))
        e("v_mul_u32_u24 v%d, 2731, v%d" % (T3, T2))
        e("v_lshrrev_b32 v%d, 16, v%d" % (T3, T3))
        e("v_mul_u32_u24 v%d, 24, v%d" % (T5, T3))
        e("v_sub_u32 v%d, v%d, v%d" % (T2, T2, T5))
        e("v_bfe_u32 v%d, v%d, 1, 3" % (T5, T3))
        e("v_xor_b32 v%d, v%d, v%d" % (T5, T5, T2))
        e("v_bfe_u32 v%d, v%d, 1, 1" % (T0, T3))
        e("v_lshlrev_b32 v%d, 2, v%d" % (T0, T0))
        e("v_xor_b32 v%d, v%d, v%d" % (T0, T0, T2))
        e("v_lshlrev_b32 v%d, 4, v%d" % (T5, T5))
        e("v_lshlrev_b32 v%d, 4, v%d" % (T0, T0))
        e("v_mul_u32_u24 v%d, 384, v%d" % (T2, T3))
        e("v_add_u32 v%d, v%d, v%d" % (T5, T5, T2))
        e("v_add_u32 v%d, v%d, v%d" % (T2, T0, T2))
        e("v_mul_u32_u24 v%d, 12288, v%d" % (T3, T3))
        e("v_add_u32 v%d, v%d, v%d" % (VW[i3], T3, T0))
        e("v_cndmask_b32 v%d, v%d, v%d, s[64:65]" % (VS[i3], T2, T5))
        e("v_cndmask_b32 v%d, v%d, v%d, s[64:65]" % (VALT[i3], T5, T2))
    e("v_and_b32 v%d, 31, v%d" % (T2, lane))
    e("s_lshl_b32 s62, s32, 5")
    e("v_add_u32 v%d, s62, v%d" % (T2, T2))
    e("v_mul_u32_u24 v%d, 1280, v%d" % (T2, T2))
    e("v_lshl_add_u32 v%d, v%d, 4, v%d" % (VX, T4, T2))
    e("v_lshlrev_b32 v%d, 4, v%d" % (VO, lane))
    e("s_waitcnt lgkmcnt(0)")

    PT = {0: dict(x=4, k=6, v=8, wq=10), 1: dict(x=14, k=16, v=18, wq=20)}
    def build_wx(blk):
        p = PT[blk]
        e("s_mul_i32 s62, s31, 384")
        srd(g, sW, p["wq"], 62, 640 * 12288 - 0)
        e("s_sub_u32 s%d, 0x%x, s62" % (sW + 2, 640 * 12288))
        e("s_mul_i32 s62, s30, 327680")
        srd(g, sX, p["x"], 62, 327680)
        e("s_mul_i32 s%d, s33, %d" % (sWSRC, 32 * 12288))
    def build_kv(blk):
        p = PT[blk]
        e("s_lshl_b32 s62, s30, 5")
        e("s_add_u32 s62, s62, s31")
        e("s_mul_i32 s62, s62, 393216")
        e("s_cmp_eq_u32 s33, 1")
        e("s_cselect_b64 s[66:67], s[%d:%d], s[%d:%d]" % (p["k"], p["k"] + 1, p["v"], p["v"] + 1))
        e("s_cselect_b64 s[68:69], s[%d:%d], s[%d:%d]" % (p["v"], p["v"] + 1, p["k"], p["k"] + 1))
        srd(g, sS, 66, 62, 393216)
        srd(g, sALT, 68, 62, 393216)
        e("s_mul_i32 s%d, s33, %d" % (sSRC, HALF))
    def build_o(blk):
        e("s_add_u32 s62, s30, %d" % (blk * 8))
        e("s_lshl_b32 s62, s62, 3")
        e("s_add_u32 s62, s62, s32")
        e("s_mul_i32 s62, s62, 393216")
        e("s_mul_i32 s63, s31, 12288")
        e("s_add_u32 s62, s62, s63")
        srd(g, sO, 28, 62, 12288)

    lbl = [0]
    def dma3(gg, voff, srd_, soff, slot, tag):
        for i3 in range(3):
            gg.e("s_add_u32 m0, s%d, %d" % (sWL, slot * SLOT + i3 * 1024))
            gg.e("s_nop 0")
            gg.vmem("buffer_load_dwordx4 v%d, s[%d:%d], s%d offen lds" % (voff[i3], srd_, srd_ + 3, soff), tag)
    def dma_pair(gg, gp):
        p = gp % 42; slot = gp % NSLOT; tag = ("pair", gp)
        if p < 10:
            dma3(gg, VW, sW, sWSRC, slot, tag)
            gg.e("s_add_u32 s%d, s%d, %d" % (sWSRC, sWSRC, 64 * 12288))
        elif p == 10 or p == 41:
            lbl[0] += 1; la = "Lalt%d" % lbl[0]; ld = "Ldone%d" % lbl[0]
            gg.e("s_cmp_eq_u32 s33, %d" % (0 if p == 10 else 1))
            gg.e("s_cbranch_scc1 %s" % la)
            save = list(gg.vm)
            dma3(gg, VS, sS, sSRC, slot, tag)
            gg.e("s_branch %s" % ld)
            gg.label(la)
            gg.vm = save
            dma3(gg, VALT, sALT, sALTO, slot, tag)
            gg.label(ld)
            if p == 10:
                gg.e("s_mul_i32 s%d, s33, %d" % (sSRC, 2 * HALF))
        else:
            dma3(gg, VS, sS, sSRC, slot, tag)
            gg.e("s_add_u32 s%d, s%d, %d" % (sSRC, sSRC, HALF))
    def xload(gg, blk, q):
        r = XR + 16 * (q % 5)
        for t in range(4):
            gg.vmem("buffer_load_dwordx4 v[%d:%d], v%d, s[%d:%d], 0 offen offset:%d" %
                    (r + 4 * t, r + 4 * t + 3, VX, sX, sX + 3, q * 128 + t * 32), ("x", blk, q))
    def sync_block(gp, blk_next_x=None):
        def f(gg):
            tags = [("pair", gp + 1)]
            if gp + 1 < 84:
                gg.vm_wait(tags)
                gg.e("s_barrier")
                gg.ready.add(gp + 1)
            if gp + 5 < 84:
                if (gp + 5) % 42 == 0: build_wx(1)
                if (gp + 5) % 42 == 10: build_kv((gp + 5) // 42)
                dma_pair(gg, gp + 5)
        return f
    def rare_block(name, S):
        L = []
        a = L.append
        a(name + ":")
        a("    v_mov_b32 v%d, v%d" % (T0, VT))
        a("    s_nop 1")
        a("    v_permlane32_swap_b32 v%d, v%d" % (VT, T0))
        a("    v_max3_f32 v%d, v%d, v%d, 0" % (VT, VT, T0))
        a("    v_sub_f32 v%d, 0, v%d" % (T0, VT))
        a("    v_exp_f32 v%d, v%d" % (T0, T0))
        for i in range(16): a("    v_sub_f32 v%d, v%d, v%d" % (S + i, S + i, VT))
        for i in range(16): a("    v_sub_f32 v%d, v%d, v%d" % (NM + i, NM + i, VT))
        a("    v_mul_f32 v%d, v%d, v%d" % (VL, VL, T0))
        for i in range(96): a("    v_mul_f32 v%d, v%d, v%d" % (O_ + i, O_ + i, T0))
        a("    s_nop 1")
        a("    s_branch %s_back" % name)
        return L
    def check(name, S):
        rare.extend(rare_block(name, S))
        return ["v_cmp_lt_f32 vcc, %s, v%d" % (f32hex(CFG.THR), VT),
                "s_cbranch_vccnz %s" % name, name + "_back:"]

    build_wx(0)
    for gp in range(5):
        dma_pair(g, gp); xload(g, 0, gp)
    g.vm_wait([("pair", 0), ("x", 0, 0)])
    e("s_barrier")
    g.ready.add(0)

    BP = CFG.BAR_POS
    for blk in range(2):
        g0 = 42 * blk
        for q in range(10):
            gp = g0 + q; slot = gp % NSLOT
            xr = XR + 16 * (q % 5)
            first = len(g.slots)
            for t in range(4):
                for dt in range(6):
                    cc = None if (q == 0 and t == 0) else O_ + 16 * dt
                    n = g.add(vfrag(slot, t >> 1, t & 1, dt), mf(O_ + 16 * dt, xr + 4 * t, cc), need=gp)
                    g.slots[n]["slotbase"] = slot * SLOT
            g.slots[first]["pre"].append(lambda gg, q=q, blk=blk: gg.vm_wait([("x", blk, q)]))
            g.slots[first + BP]["post"].append(sync_block(gp))
            if q + 5 < 10:
                g.slots[first + 23]["post"].append(lambda gg, q=q, blk=blk: xload(gg, blk, q + 5))
        cv = ["s_nop 15"]
        for i in range(0, 96, 2):
            cv.append("v_pk_mul_f32 v[%d:%d], v[%d:%d], s[60:61]" % (O_ + i, O_ + i + 1, O_ + i, O_ + i + 1))
        for i in range(48):
            cv.append("v_cvt_pk_bf16_f32 v%d, v%d, v%d" % (Q_ + i, O_ + 2 * i, O_ + 2 * i + 1))
        cv.append("v_mov_b32 v%d, 0" % VL)
        g.slots[-1]["post"].extend(cv)
        gp = g0 + 10; slot = gp % NSLOT
        first = len(g.slots)
        zero = ["v_mov_b32 v%d, 0" % (O_ + i) for i in range(96)]
        zs = spread(zero, list(range(12)))
        for s in range(12):
            n = g.add(kfrag(slot, 0, s), mf(S_[0], Q_ + 4 * s, None if s == 0 else S_[0]), need=gp, post=zs.get(s))
            g.slots[n]["slotbase"] = slot * SLOT
        ft = ["s_nop 15"] + max_ops(S_[0]) + [
            "v_mov_b32 v%d, v%d" % (T0, VT), "s_nop 1",
            "v_permlane32_swap_b32 v%d, v%d" % (VT, T0),
            "v_max_f32 v%d, v%d, v%d" % (VT, VT, T0),
            "v_sub_f32 v%d, 0, v%d" % (T0, VT)]
        ft += ["v_mov_b32 v%d, v%d" % (NM + i, T0) for i in range(16)]
        ft += ["v_add_f32 v%d, v%d, v%d" % (S_[0] + i, S_[0] + i, T0) for i in range(16)]
        g.slots[-1]["post"].extend(ft)
        sm = softmax_ops(S_[0])
        sp = spread(sm[:30], list(range(12)))
        for s in range(12):
            n = g.add(kfrag(slot, 1, s), mf(S_[1], Q_ + 4 * s, NM if s == 0 else S_[1]), need=gp, post=sp.get(s))
            g.slots[n]["slotbase"] = slot * SLOT
        g.slots[first + BP]["post"].append(sync_block(gp))
        for j in range(30):
            gp = g0 + 11 + j; slot = gp % NSLOT
            Sc = S_[j & 1]; Sn = S_[(j + 1) & 1]
            first = len(g.slots)
            fa = spread(softmax_ops(Sc)[30:], [0, 1, 2, 3])
            for k, v in spread(max_ops(Sn), [4, 5, 6, 7, 8, 9, 10, 11]).items(): fa.setdefault(k, []).extend(v)
            i = 0
            for t in range(2):
                for dt in range(6):
                    n = g.add(vfrag(slot, 0, t, dt), mf(O_ + 16 * dt, Sc + 8 * t, O_ + 16 * dt), need=gp, post=fa.get(i))
                    g.slots[n]["slotbase"] = slot * SLOT
                    i += 1
            if j % 6 == 0 and j < 24:
                g.slots[first]["pre"].append(lambda gg, j=j, blk=blk: gg.marks.__setitem__(("it", blk, j // 6), len(gg.out)))
            if j == 24:
                g.slots[first]["pre"].append(lambda gg, blk=blk: gg.marks.__setitem__(("it", blk, 4), len(gg.out)))
            nm = "Lrare_%d_%d" % (blk, j % 6 if j < 24 else j)
            if j < 6 or j >= 24:
                ck = check(nm, Sn)
            else:
                ck = ["v_cmp_lt_f32 vcc, %s, v%d" % (f32hex(CFG.THR), VT), "s_cbranch_vccnz %s" % nm, nm + "_back:"]
            g.slots[-1]["post"].extend(ck)
            sp = spread(softmax_ops(Sn)[:30], list(range(12)))
            for s in range(12):
                n = g.add(kfrag(slot, 1, s), mf(Sc, Q_ + 4 * s, NM if s == 0 else Sc), need=gp, post=sp.get(s))
                g.slots[n]["slotbase"] = slot * SLOT
            g.slots[first + BP]["post"].append(sync_block(gp))
            if j == 29 and blk == 0:
                for q in range(3):
                    g.slots[-1]["post"].append(lambda gg, q=q: xload(gg, 1, q))
        gp = g0 + 41; slot = gp % NSLOT
        Sc = S_[0]; Sn = S_[1]
        first = len(g.slots)
        fa = spread(softmax_ops(Sc)[30:], [0, 1, 2, 3])
        for k, v in spread(max_ops(Sn), [4, 5, 6, 7, 8, 9, 10, 11]).items(): fa.setdefault(k, []).extend(v)
        i = 0
        for t in range(2):
            for dt in range(6):
                n = g.add(vfrag(slot, 0, t, dt), mf(O_ + 16 * dt, Sc + 8 * t, O_ + 16 * dt), need=gp, post=fa.get(i))
                g.slots[n]["slotbase"] = slot * SLOT
                i += 1
        g.slots[-1]["post"].extend(check("Lrare_%d_f" % blk, Sn))
        sm = softmax_ops(Sn)
        g.slots[-1]["post"].extend(sm[:20] + ["s_nop 1"])
        fb = spread(sm[20:], [0, 1, 2, 3])
        i = 0
        for t in range(2):
            for dt in range(6):
                n = g.add(vfrag(slot, 1, t, dt), mf(O_ + 16 * dt, Sn + 8 * t, O_ + 16 * dt), need=gp, post=fb.get(i))
                g.slots[n]["slotbase"] = slot * SLOT
                i += 1
        g.slots[first + BP]["post"].append(sync_block(gp))
        def epi(gg, blk=blk):
            if blk == 0:
                xload(gg, 1, 3); xload(gg, 1, 4)
            build_o(blk)
            gg.e("v_mov_b32 v%d, v%d" % (T0, VL))
            gg.e("s_nop 1")
            gg.e("v_permlane32_swap_b32 v%d, v%d" % (VL, T0))
            gg.e("v_add_f32 v%d, v%d, v%d" % (VL, VL, T0))
            gg.e("v_rcp_f32 v%d, v%d" % (T0, VL))
            gg.e("s_nop 7")
            for f in range(12):
                b = O_ + 8 * f
                for i in range(8):
                    gg.e("v_mul_f32 v%d, v%d, v%d" % (b + i, b + i, T0))
                for i in range(4):
                    gg.e("v_cvt_pk_bf16_f32 v%d, v%d, v%d" % (b + i, b + 2 * i, b + 2 * i + 1))
                gg.vmem("buffer_store_dwordx4 v[%d:%d], v%d, s[%d:%d], 0 offen offset:%d" %
                        (b, b + 3, VO, sO, sO + 3, (f & 3) * 1024), ("o", blk))
                if (f & 3) == 3 and f < 11:
                    gg.e("v_add_u32 v%d, 4096, v%d" % (VO, VO))
            gg.e("v_subrev_u32 v%d, 8192, v%d" % (VO, VO))
            gg.e("s_nop 1")
        g.slots[-1]["post"].append(epi)
    g.run()
    out = g.out
    res = []
    pos = 0
    for blk in range(2):
        m = [g.marks[("it", blk, i)] for i in range(5)]
        its = [out[m[i]:m[i + 1]] for i in range(4)]
        for i in range(1, 4):
            if its[i] != its[0]:
                import difflib
                print("\n".join(list(difflib.unified_diff(its[0], its[i], lineterm="", n=2))[:60]))
            assert its[i] == its[0], ("loop iteration mismatch", blk, i)
        res += out[pos:m[0]]
        res.append("    s_mov_b32 s%d, 4" % sLOOP)
        res.append("Lloop%d:" % blk)
        res += its[0]
        res.append("    s_sub_u32 s%d, s%d, 1" % (sLOOP, sLOOP))
        res.append("    s_cmp_lg_u32 s%d, 0" % sLOOP)
        res.append("    s_cbranch_scc1 Lloop%d" % blk)
        pos = m[4]
    res += out[pos:]
    res.append("attn_done:")
    res.append("    s_endpgm")
    res += rare
    return res

O_WS_BYTES = 2 * 8 * 8 * 393216
PART_OFF = O_WS_BYTES
def gen_oproj():
    ACC = 0; BR = 80; POOL2 = 208
    VA2 = [240]; VD = [241, 242, 243, 244, 245]; VB = 246; T = [247, 248, 249, 250]
    SL = 40960; NS = 4
    g = Stream(POOL2, CFG.NP, CFG.D, CFG.G)
    g.groups = {"V": VA2}; g.base = {"V": 0}; g.ready = set(); g.gran = SL
    e = g.e
    g.label("oproj_kernel")
    e("s_cmp_ge_u32 s2, 256")
    e("s_cbranch_scc1 oproj_done")
    e("s_load_dwordx2 s[4:5], s[0:1], 32")
    e("s_load_dwordx2 s[6:7], s[0:1], 72")
    e("s_load_dwordx2 s[28:29], s[0:1], 96")
    e("s_and_b32 s39, s2, 7")
    e("s_lshr_b32 s30, s39, 2")
    e("s_and_b32 s31, s39, 3")
    e("s_lshr_b32 s39, s2, 3")
    e("s_lshr_b32 s35, s39, 2")
    e("s_and_b32 s36, s39, 3")
    e("v_lshrrev_b32 v%d, 6, v0" % T[0])
    e("v_and_b32 v%d, 63, v0" % T[1])
    e("s_nop 0")
    e("v_readfirstlane_b32 s32, v%d" % T[0])
    e("s_nop 3")
    e("s_mul_i32 s34, s32, 5120")
    lane = T[1]
    e("v_bfe_u32 v%d, v%d, 2, 2" % (T[2], lane))
    e("v_lshrrev_b32 v%d, 5, v%d" % (T[3], lane))
    e("v_lshl_add_u32 v%d, v%d, 3, v%d" % (T[2], T[3], T[2]))
    e("v_mul_u32_u24 v%d, 320, v%d" % (T[2], T[2]))
    e("v_bfe_u32 v%d, v%d, 4, 1" % (T[3], lane))
    e("v_lshl_add_u32 v%d, v%d, 5, v%d" % (T[2], T[3], T[2]))
    e("v_and_b32 v%d, 1, v%d" % (T[3], lane))
    e("v_lshl_add_u32 v%d, v%d, 4, v%d" % (T[2], T[3], T[2]))
    e("v_bfe_u32 v%d, v%d, 1, 1" % (T[3], lane))
    e("v_lshl_add_u32 v%d, v%d, 3, v%d" % (VA2[0], T[3], T[2]))
    e("s_lshl_b32 s39, s32, 4")
    for i5 in range(5):
        e("v_add_u32 v%d, %d, v%d" % (T[2], 64 * i5, lane))
        e("v_mul_u32_u24 v%d, 3277, v%d" % (T[3], T[2]))
        e("v_lshrrev_b32 v%d, 16, v%d" % (T[3], T[3]))
        e("v_mul_u32_u24 v%d, 20, v%d" % (T[0], T[3]))
        e("v_sub_u32 v%d, v%d, v%d" % (T[2], T[2], T[0]))
        e("v_add_u32 v%d, s39, v%d" % (T[3], T[3]))
        e("v_mul_u32_u24 v%d, 1280, v%d" % (T[3], T[3]))
        e("v_lshl_add_u32 v%d, v%d, 4, v%d" % (VD[i5], T[2], T[3]))
    e("v_lshlrev_b32 v%d, 4, v%d" % (VB, lane))
    e("s_waitcnt lgkmcnt(0)")
    e("s_cmp_eq_u32 s30, 1")
    e("s_cselect_b64 s[8:9], s[6:7], s[4:5]")
    e("s_mul_i32 s39, s31, %d" % (1536 * 1280))
    e("s_mul_i32 s62, s36, 320")
    e("s_add_u32 s39, s39, s62")
    srd(g, 40, 8, 39, 0)
    e("s_sub_u32 s42, 0x%x, s39" % (6144 * 1280))
    e("s_lshl_b32 s39, s30, 3")
    e("s_add_u32 s39, s39, s35")
    e("s_lshl_b32 s39, s39, 3")
    e("s_add_u32 s39, s39, s32")
    e("s_mul_i32 s39, s39, 393216")
    e("s_mul_i32 s62, s31, 98304")
    e("s_add_u32 s39, s39, s62")
    srd(g, 44, 28, 39, 98304)
    e("s_lshl_b32 s39, s30, 3")
    e("s_add_u32 s39, s39, s35")
    e("s_lshl_b32 s39, s39, 2")
    e("s_add_u32 s39, s39, s36")
    e("s_lshl_b32 s39, s39, 2")
    e("s_add_u32 s39, s39, s31")
    e("s_lshl_b32 s39, s39, 3")
    e("s_add_u32 s39, s39, s32")
    e("s_mul_i32 s39, s39, 20480")
    e("s_add_u32 s39, s39, 0x%x" % PART_OFF)
    srd(g, 48, 28, 39, 20480)
    e("s_mov_b32 s37, 0")
    e("s_mov_b32 s38, 0")
    NB = 12
    def dma(gg, p):
        slot = p % NS
        for i5 in range(5):
            gg.e("s_add_u32 m0, s34, %d" % (slot * SL + i5 * 1024))
            gg.e("s_nop 0")
            gg.vmem("buffer_load_dwordx4 v%d, s[40:43], s37 offen lds" % VD[i5], ("w", p))
        gg.e("s_add_u32 s37, s37, %d" % (128 * 1280))
    def bload(gg, p):
        r = BR + 32 * (p % 4)
        for t in range(8):
            if t == 4: gg.e("s_add_u32 s38, s38, 4096")
            gg.vmem("buffer_load_dwordx4 v[%d:%d], v%d, s[44:47], s38 offen offset:%d" %
                    (r + 4 * t, r + 4 * t + 3, VB, (t & 3) * 1024), ("b", p))
        gg.e("s_add_u32 s38, s38, 4096")
    for p in range(3):
        dma(g, p); bload(g, p)
    bload(g, 3)
    g.vm_wait([("w", 0), ("b", 0)])
    e("s_barrier")
    g.ready.add(0)
    def sync(p):
        def f(gg):
            if p + 1 < NB:
                gg.vm_wait([("w", p + 1), ("b", p + 1)])
                gg.e("s_barrier")
                gg.ready.add(p + 1)
            if p + 3 < NB: dma(gg, p + 3)
        return f
    for p in range(NB):
        slot = p % NS
        br = BR + 32 * (p % 4)
        first = len(g.slots)
        for t in range(8):
            for nt in range(5):
                off = slot * SL + 16 * t * 320 + nt * 64
                cc = None if (p == 0 and t == 0) else ACC + 16 * nt
                n = g.add([("tr", "V", 0, off), ("tr", "V", 0, off + 4 * 320)], mf(ACC + 16 * nt, br + 4 * t, cc), need=p)
                g.slots[n]["slotbase"] = slot * SL
        g.slots[first + 12]["post"].append(sync(p))
        if p + 4 < NB:
            g.slots[first + 39]["post"].append(lambda gg, p=p: bload(gg, p + 4))
    def epi(gg):
        gg.e("s_nop 15")
        for i in range(20):
            gg.vmem("buffer_store_dwordx4 v[%d:%d], v%d, s[48:51], 0 offen offset:%d" %
                    (ACC + 4 * i, ACC + 4 * i + 3, VB, (i & 3) * 1024), "p")
            if (i & 3) == 3 and i < 19:
                gg.e("v_add_u32 v%d, 4096, v%d" % (VB, VB))
    g.slots[-1]["post"].append(epi)
    g.run()
    res = g.out
    res.append("oproj_done:")
    res.append("    s_endpgm")
    return res

def gen_reduce():
    L = []
    e = lambda s: L.append("    " + s)
    L.append("reduce_kernel:")
    e("s_cmp_ge_u32 s2, 1280")
    e("s_cbranch_scc1 reduce_done")
    e("s_load_dwordx2 s[4:5], s[0:1], 80")
    e("s_load_dwordx2 s[6:7], s[0:1], 96")
    e("v_lshrrev_b32 v1, 6, v0")
    e("v_and_b32 v2, 63, v0")
    e("s_nop 0")
    e("v_readfirstlane_b32 s8, v1")
    e("s_nop 3")
    e("s_lshl_b32 s9, s2, 2")
    e("s_add_u32 s8, s8, s9")
    e("s_mul_i32 s9, s8, 52429")
    e("s_lshr_b32 s9, s9, 22")
    e("s_mul_i32 s10, s9, 80")
    e("s_sub_u32 s10, s8, s10")
    e("s_mul_i32 s11, s10, 205")
    e("s_lshr_b32 s11, s11, 11")
    e("s_mul_i32 s12, s11, 10")
    e("s_sub_u32 s12, s10, s12")
    e("s_waitcnt lgkmcnt(0)")
    e("s_lshl_b32 s13, s9, 5")
    e("s_add_u32 s13, s13, s11")
    e("s_mul_i32 s13, s13, 20480")
    e("s_lshl_b32 s14, s12, 11")
    e("s_add_u32 s13, s13, s14")
    e("s_add_u32 s13, s13, 0x%x" % PART_OFF)
    e("s_add_u32 s16, s6, s13")
    e("s_addc_u32 s17, s7, 0")
    e("s_mov_b32 s18, 0x%x" % (3 * 163840 + 2048))
    e("s_mov_b32 s19, 0x00020000")
    e("v_lshlrev_b32 v3, 4, v2")
    for ks in range(4):
        e("s_mov_b32 s14, %d" % (ks * 163840))
        e("buffer_load_dwordx4 v[%d:%d], v3, s[16:19], s14 offen" % (8 + 8 * ks, 11 + 8 * ks))
        e("buffer_load_dwordx4 v[%d:%d], v3, s[16:19], s14 offen offset:1024" % (12 + 8 * ks, 15 + 8 * ks))
    e("s_and_b32 s20, s9, 3")
    e("s_lshr_b32 s21, s9, 2")
    e("s_and_b32 s22, s21, 7")
    e("s_lshr_b32 s21, s21, 3")
    e("s_lshl_b32 s22, s22, 8")
    e("s_lshl_b32 s23, s11, 5")
    e("s_add_u32 s22, s22, s23")
    e("s_mul_i32 s22, s22, 2560")
    e("s_mul_i32 s21, s21, 1280")
    e("s_mul_i32 s20, s20, 320")
    e("s_lshl_b32 s23, s12, 5")
    e("s_add_u32 s22, s22, s21")
    e("s_add_u32 s22, s22, s20")
    e("s_add_u32 s22, s22, s23")
    e("s_mov_b32 s24, s4")
    e("s_mov_b32 s25, s5")
    e("s_mov_b32 s26, 0x%x" % (8 * 256 * 1280 * 2))
    e("s_mov_b32 s27, 0x00020000")
    e("v_and_b32 v4, 31, v2")
    e("v_mul_u32_u24 v4, 2560, v4")
    e("v_lshrrev_b32 v5, 5, v2")
    e("v_lshl_add_u32 v4, v5, 4, v4")
    e("s_waitcnt vmcnt(0)")
    for i in range(8):
        e("v_add_f32 v%d, v%d, v%d" % (8 + i, 8 + i, 16 + i))
        e("v_add_f32 v%d, v%d, v%d" % (24 + i, 24 + i, 32 + i))
    for i in range(8):
        e("v_add_f32 v%d, v%d, v%d" % (8 + i, 8 + i, 24 + i))
    for i in range(4):
        e("v_cvt_pk_bf16_f32 v%d, v%d, v%d" % (40 + i, 8 + 2 * i, 9 + 2 * i))
    e("buffer_store_dwordx4 v[40:43], v4, s[24:27], s22 offen")
    L.append("reduce_done:")
    e("s_endpgm")
    return L

def kd(name, vgpr, sgpr=102):
    return """.amdhsa_kernel %s
  .amdhsa_next_free_vgpr %d
  .amdhsa_next_free_sgpr %d
  .amdhsa_accum_offset %d
  .amdhsa_group_segment_fixed_size 0
  .amdhsa_kernarg_size 104
  .amdhsa_user_sgpr_count 2
  .amdhsa_user_sgpr_kernarg_segment_ptr 1
  .amdhsa_system_sgpr_workgroup_id_x 1
.end_amdhsa_kernel""" % (name, vgpr, sgpr, (vgpr + 3) // 4 * 4)

def main(path):
    hdr = open("concat_heads__gqa_block_cached__gqa_block_cached__near_ridge.s.ref").read().split("\n")
    hdr = [l for l in hdr if l.startswith(";") and "@launch" not in l and "Override" not in l and "grid=ceil" not in l]
    T = hdr[:]
    T.append("; @launch kernel=attn_kernel grid=(256,1,1) block=(512,1,1) lds=%d" % (NSLOT * SLOT))
    T.append("; @launch kernel=oproj_kernel grid=(256,1,1) block=(512,1,1) lds=163840")
    T.append("; @launch kernel=reduce_kernel grid=(1280,1,1) block=(256,1,1) lds=0")
    T.append('.amdgcn_target "amdgcn-amd-amdhsa--gfx950"')
    T.append(".text")
    for name, body in (("attn_kernel", gen_attn()), ("oproj_kernel", gen_oproj()), ("reduce_kernel", gen_reduce())):
        T.append(".globl %s" % name)
        T.append(".p2align 8")
        T.append(".type %s,@function" % name)
        T += body
    T.append('.section .rodata,"a"')
    for name, v in (("attn_kernel", 256), ("oproj_kernel", 256), ("reduce_kernel", 48)):
        T.append(".p2align 6")
        T.append(kd(name, v))
    open(path, "w").write("\n".join(T) + "\n")

if __name__ == "__main__":
    main(sys.argv[1] if len(sys.argv) > 1 else "concat_heads__gqa_block_cached__gqa_block_cached__near_ridge.s")
```
